```python
import torch

def _softmax(x, axis=-1):
    return torch.softmax(x, dim=axis)
def _gelu(x):
    return torch.nn.functional.gelu(x, approximate="tanh")
def _silu(x):
    return torch.nn.functional.silu(x)
def _sigmoid(x):
    return torch.sigmoid(x)
def _layernorm(x, axis=-1, eps=1e-5):
    m = x.mean(dim=axis, keepdim=True)
    v = x.var(dim=axis, keepdim=True, unbiased=False)
    return (x - m) / torch.sqrt(v + eps)
def _scatter_add(tgt, idx, src, axis=0):
    return tgt.clone().index_add_(axis, idx, src)
def _segment_sum(src, seg, n):
    out = torch.zeros((n,) + src.shape[1:], dtype=src.dtype)
    return out.index_add_(0, seg, src)
def _pad(x, pw):
    flat = tuple(v for pair in reversed(pw) for v in pair)
    return torch.nn.functional.pad(x, flat)

kernel_name = 'parallel_sum__linear_attn_block__glu_gated_swiglu__prompt'

def setup_inputs():

    _w = (lambda a: (lambda t: t.to(torch.bfloat16) if t.is_floating_point() else t)(torch.as_tensor(a)))
    def _A_setup():
        B, S, D = 1, 2048, 512
        return {
            "x": _w((lambda *s: torch.randn(*s, dtype=torch.bfloat16) * 0.05)(B, S, D)),
            "wqkv": _w((lambda *s: torch.randn(*s, dtype=torch.bfloat16) * 0.05)(D, 3 * D)),
            "wo": _w((lambda *s: torch.randn(*s, dtype=torch.bfloat16) * 0.05)(D, D)),
        }
    _A_in = _A_setup()

    def _B_setup():
        B, S, D, F = 1, 2048, 512, 1792
        return {
            "x": _w((lambda *s: torch.randn(*s, dtype=torch.bfloat16) * 0.05)(B, S, D)),
            "w1": _w((lambda *s: torch.randn(*s, dtype=torch.bfloat16) * 0.2)(D, F) * (2.0 / D) ** 0.5),
            "w3": _w((lambda *s: torch.randn(*s, dtype=torch.bfloat16) * 0.2)(D, F) * (2.0 / D) ** 0.5),
            "w2": _w((lambda *s: torch.randn(*s, dtype=torch.bfloat16) * 0.2)(F, D) * (2.0 / F) ** 0.5),
        }
    _B_in = _B_setup()

    return {
        "A_x": _A_in["x"],
        "A_wqkv": _A_in["wqkv"],
        "A_wo": _A_in["wo"],
        "B_x": _B_in["x"],
        "B_w1": _B_in["w1"],
        "B_w3": _B_in["w3"],
        "B_w2": _B_in["w2"],
    }

def reference(A_x, A_wqkv, A_wo, B_x, B_w1, B_w3, B_w2):
    def _A_ref(x, wqkv, wo):
        B, S, D = x.shape
        H = 32; Dh = D // H
        qkv = (lambda x, *d: x.permute(*d))((x @ wqkv).reshape(B, S, 3, H, Dh), 2, 0, 3, 1, 4)
        q, k, v = qkv[0], qkv[1], qkv[2]
        phi = lambda t: torch.where(t > 0, t + 1, torch.exp(t)) + 1e-6
        pq, pk = phi(q), phi(k)
        kv = torch.einsum("bhsd,bhse->bhde", pk, v)
        z = torch.einsum("bhsd->bhd", pk)
        num = torch.einsum("bhqd,bhde->bhqe", pq, kv)
        den = torch.einsum("bhqd,bhd->bhq", pq, z)[..., None] + 1e-6
        o = num / den
        return (lambda x, *d: x.permute(*d))(o, 0, 2, 1, 3).reshape(B, S, D) @ wo

    def _B_ref(x, w1, w3, w2):
        gate = torch.einsum("bsd,df->bsf", x, w1)
        up = torch.einsum("bsd,df->bsf", x, w3)
        h = _silu(gate) * up
        out = torch.einsum("bsf,fd->bsd", h, w2)
        return out

    x = A_x
    xn = _layernorm(x, axis=-1)
    return x + _A_ref(xn, A_wqkv, A_wo) + _B_ref(xn, B_w1, B_w3, B_w2)
```

```python
import re

def parse_regs(tok):
    tok = tok.strip()
    neg = tok.lstrip('-')
    m = re.fullmatch(r'abs\((.*)\)', neg)
    if m: neg = m.group(1)
    neg = neg.strip('|')
    m = re.fullmatch(r'([vsa])\[(\d+):(\d+)\]', neg)
    if m:
        return [(m.group(1), i) for i in range(int(m.group(2)), int(m.group(3)) + 1)]
    m = re.fullmatch(r'([vsa])(\d+)', neg)
    if m:
        return [(m.group(1), int(m.group(2)))]
    if neg in ('vcc', 'vcc_lo', 'vcc_hi'): return [('x', 'vcc')]
    if neg in ('exec', 'exec_lo', 'exec_hi'): return [('x', 'exec')]
    if neg == 'm0': return [('x', 'm0')]
    if neg == 'scc': return [('x', 'scc')]
    return []

TRANS = re.compile(r'v_(exp|log|rcp|rsq|sqrt|sin|cos)_f32')

class Ins:
    __slots__ = ('text', 'mn', 'dst', 'src', 'kind', 'tag', 'opt', 'passes', 'comment', 'raw', 'region')
    def __init__(self, text, tag=None, opt=False):
        self.text = text.strip()
        self.tag = tag
        self.opt = opt
        self.raw = False
        self.region = None
        t = self.text.split(';')[0].strip()
        if t.endswith(':') or t.startswith('.'):
            self.mn = ''; self.dst = []; self.src = []; self.kind = 'label'; self.passes = 0
            return
        parts = t.split(None, 1)
        mn = parts[0]
        self.mn = mn
        rest = parts[1] if len(parts) > 1 else ''
        ops = []
        depth = 0; cur = ''
        for ch in rest:
            if ch == '[': depth += 1
            if ch == ']': depth -= 1
            if ch == ',' and depth == 0:
                ops.append(cur.strip()); cur = ''
            else:
                cur += ch
        if cur.strip(): ops.append(cur.strip())
        mods = []
        if ops:
            sp = ops[-1].split()
            ops[-1] = sp[0] if sp else ''
            mods = sp[1:]
        R = [parse_regs(o) for o in ops]
        dst = []; src = []
        self.passes = 0
        if mn.startswith('v_mfma'):
            self.kind = 'mfma'
            self.passes = 8 if '32x32' in mn else 4
            dst = R[0]; src = R[1] + R[2] + R[3]
        elif mn.startswith('ds_'):
            self.kind = 'ds'
            if mn.startswith(('ds_read', 'ds_bpermute', 'ds_swizzle', 'ds_permute')):
                dst = R[0]; src = sum(R[1:], [])
            else:
                src = sum(R, [])
        elif mn.startswith(('buffer_', 'global_')):
            self.kind = 'vmem'
            allm = mods + ops
            if 'lds' in mods:
                src = sum(R, []) + [('x', 'm0')]
            elif '_load' in mn or ('atomic' in mn and 'sc0' in mods):
                dst = R[0]; src = sum(R[1:], [])
                if 'atomic' in mn: src += R[0]
            else:
                src = sum(R, [])
        elif mn.startswith('v_'):
            self.kind = 'trans' if TRANS.match(mn) else 'valu'
            if mn.startswith('v_cmp'):
                dst = R[0]; src = sum(R[1:], [])
            elif mn.startswith(('v_permlane32_swap', 'v_permlane16_swap', 'v_swap')):
                dst = R[0] + R[1]; src = R[0] + R[1]
            elif mn.startswith(('v_add_co', 'v_sub_co', 'v_addc_co', 'v_subb_co')):
                dst = R[0] + R[1]; src = sum(R[2:], [])
            elif mn.startswith(('v_fmac', 'v_dot2c', 'v_mac')):
                dst = R[0]; src = sum(R, [])
            elif mn.startswith('v_nop'):
                pass
            else:
                dst = R[0]; src = sum(R[1:], [])
                if mn.startswith('v_cndmask') and len(ops) == 3: src += [('x', 'vcc')]
            src = src + [('x', 'exec')]
        elif mn.startswith('s_'):
            if mn in ('s_waitcnt', 's_barrier', 's_nop', 's_endpgm', 's_sleep', 's_setprio') :
                self.kind = 'ctl'
            elif mn.startswith(('s_cbranch', 's_branch')):
                self.kind = 'branch'
                if 'scc' in mn: src = [('x', 'scc')]
                if 'vcc' in mn: src = [('x', 'vcc')]
                if 'exec' in mn: src = [('x', 'exec')]
            elif mn.startswith(('s_load', 's_memtime', 's_memrealtime', 's_buffer_load')):
                self.kind = 'smem'
                dst = R[0]; src = sum(R[1:], [])
            elif mn.startswith(('s_cmp', 's_bitcmp')):
                self.kind = 'salu'; dst = [('x', 'scc')]; src = sum(R, [])
            else:
                self.kind = 'salu'
                dst = R[0]; src = sum(R[1:], [])
                if 'saveexec' in mn: dst = dst + [('x', 'exec')]; src = src + [('x', 'exec')]
                if not mn.startswith(('s_mov', 's_getpc', 's_movk', 's_cselect', 's_mul_i32', 's_mul_hi')): dst = dst + [('x', 'scc')]
                if mn.startswith(('s_cselect', 's_addc', 's_subb')): src = src + [('x', 'scc')]
        else:
            raise ValueError('unknown instr ' + t)
        self.dst = dst; self.src = src

class Prog:
    def __init__(self):
        self.ins = []
    def I(self, text, tag=None, opt=False):
        for line in text.split('\n'):
            line = line.strip()
            if not line or line.startswith(';'): continue
            self.ins.append(Ins(line, tag, opt))
    def add(self, lst):
        self.ins.extend(lst)
    def wait_vm(self, tag):
        i = Ins('s_nop 0'); i.kind = 'pseudo'; i.mn = 'wait_vm'; i.tag = tag
        self.ins.append(i)
    def reset_counters(self):
        i = Ins('s_nop 0'); i.kind = 'pseudo'; i.mn = 'reset'
        self.ins.append(i)

def mk(text, tag=None, opt=False):
    out = []
    for line in text.split('\n'):
        line = line.strip()
        if not line or line.startswith(';'): continue
        out.append(Ins(line, tag, opt))
    return out

_region_id = [0]
def optional(lst):
    _region_id[0] += 1
    rid = _region_id[0]
    b = Ins('s_nop 0'); b.kind = 'pseudo'; b.mn = 'opt_begin'
    e = Ins('s_nop 0'); e.kind = 'pseudo'; e.mn = 'opt_end'
    for i in lst:
        i.region = rid
        i.opt = True
    return [b] + lst + [e]

def mk_wait_vm(tag):
    i = Ins('s_nop 0'); i.kind = 'pseudo'; i.mn = 'wait_vm'; i.tag = tag
    return i

def insert_waits(ins):
    out = []
    vm = []
    lg = []
    smem_pending = set()
    saved = None
    cur_region = None
    def cnt_after(lst, idx):
        return sum(1 for o in lst[idx + 1:] if (not o['opt']) or (cur_region is not None and o['region'] == cur_region))
    def emit(text):
        w = Ins(text)
        if cur_region is not None:
            w.region = cur_region; w.opt = True
        out.append(w)
    def trim(lst, n):
        if n == 0: return []
        cnt = 0; keep = len(lst)
        for k in range(len(lst) - 1, -1, -1):
            if cnt >= n: break
            keep = k
            o = lst[k]
            if (not o['opt']) or (cur_region is not None and o['region'] == cur_region): cnt += 1
        return lst[keep:]
    for i in ins:
        if i.kind == 'pseudo':
            if i.mn == 'reset':
                vm = []; lg = []; smem_pending = set()
            elif i.mn == 'opt_begin':
                saved = ([dict(o) for o in vm], [dict(o) for o in lg], set(smem_pending))
                cur_region = -1
            elif i.mn == 'opt_end':
                rid = cur_region
                vm_in = [o for o in vm if o['region'] == rid and o['opt']]
                lg_in = [o for o in lg if o['region'] == rid and o['opt']]
                vm = saved[0] + vm_in; lg = saved[1] + lg_in; smem_pending = saved[2] | smem_pending
                saved = None; cur_region = None
            elif i.mn == 'wait_vm':
                tags = i.tag if isinstance(i.tag, (list, tuple, set)) else [i.tag]
                idx = -1
                for k, o in enumerate(vm):
                    if o['tag'] in tags: idx = k
                if idx >= 0:
                    n = cnt_after(vm, idx)
                    assert n <= 63, "vmcnt overflow"
                    emit(f's_waitcnt vmcnt({n})')
                    vm = vm[idx + 1:]
            continue
        if cur_region == -1 and i.region is not None: cur_region = i.region
        regs = set(i.src) | set(i.dst)
        wv = None; wl = None
        if i.mn == 's_waitcnt':
            m = re.search(r'vmcnt\((\d+)\)', i.text)
            if m: vm = trim(vm, int(m.group(1)))
            m = re.search(r'lgkmcnt\((\d+)\)', i.text)
            if m:
                n = int(m.group(1))
                lg = trim(lg, n)
                if n == 0: smem_pending = set()
            out.append(i); continue
        for k, o in enumerate(vm):
            if o['dst'] & regs: wv = k
        for k, o in enumerate(lg):
            if o['dst'] & regs: wl = k
        need_smem = bool(smem_pending & regs)
        parts = []
        if wv is not None:
            n = cnt_after(vm, wv); assert n <= 63
            parts.append(f'vmcnt({n})'); vm = vm[wv + 1:]
        if need_smem:
            parts.append('lgkmcnt(0)'); lg = []; smem_pending = set()
        elif wl is not None:
            n = cnt_after(lg, wl)
            if smem_pending: n = 0
            n = min(n, 15)
            parts.append(f'lgkmcnt({n})')
            lg = trim(lg, n)
            if n == 0: smem_pending = set()
        if parts:
            emit('s_waitcnt ' + ' '.join(parts))
        if i.kind == 'vmem':
            vm.append(dict(dst=set(r for r in i.dst if r[0] in 'va'), tag=i.tag, opt=i.opt, region=i.region))
        elif i.kind == 'ds':
            lg.append(dict(dst=set(i.dst), opt=i.opt, region=i.region))
        elif i.kind == 'smem':
            smem_pending |= set(i.dst)
        out.append(i)
    return out

def states(i):
    if i.kind == 'label': return 0
    if i.mn == 's_nop':
        return int(i.text.split()[1]) + 1
    return 1

def insert_nops(ins):
    out = []
    hist = []
    W = 24
    for i in ins:
        if i.kind == 'label':
            out.append(i); continue
        need = 0
        S = set(i.src); D = set(i.dst)
        vS = {r for r in S if r[0] == 'v'}; vD = {r for r in D if r[0] == 'v'}
        dist_of = {}
        for k in range(len(hist) - 1, -1, -1):
            p = hist[k]
            d = 0
            for x in hist[k + 1:]:
                if x.region is None or x.region == p.region or x.region == i.region: d += states(x)
            dist_of[k] = d
        for k, p in enumerate(hist):
            dist = dist_of[k]
            if dist >= W: continue
            pD = set(p.dst); pS = set(p.src)
            req = 0
            if p.kind in ('valu', 'trans'):
                pv = {r for r in pD if r[0] == 'v'}
                if i.kind == 'mfma' and pv & vS: req = max(req, 2)
                if i.mn.startswith('v_permlane') and pv & vS: req = max(req, 2)
                if i.mn.endswith('_dpp') or 'row_' in i.text or 'quad_perm' in i.text:
                    if pv & vS: req = max(req, 2)
                if i.mn.startswith(('v_readfirstlane', 'v_readlane')) and pv & vS: req = max(req, 1)
                if p.kind == 'trans' and i.kind in ('valu',) and pv & vS: req = max(req, 1)
                ps = {r for r in pD if r[0] == 's' or r == ('x', 'vcc')}
                if ps & S:
                    if i.kind in ('valu', 'trans', 'mfma'): req = max(req, 2)
                    if i.kind == 'vmem': req = max(req, 5)
                    if i.kind in ('salu', 'branch'): req = max(req, 1)
                    if i.mn.startswith(('v_readlane', 'v_writelane')): req = max(req, 4)
                if ('x', 'exec') in pD:
                    if i.kind == 'mfma': req = max(req, 4)
                    if i.kind in ('valu', 'trans'): req = max(req, 2)
            if p.kind == 'salu':
                if ('x', 'm0') in pD and ('x', 'm0') in S: req = max(req, 1)
                if ('x', 'exec') in pD and i.kind == 'mfma': req = max(req, 4)
            if p.kind == 'mfma':
                n = p.passes
                pv = pD
                raw = {4: 8, 8: 12}[n]
                if i.kind == 'mfma':
                    ops = i.text.split(None, 1)[1]
                    o = [x.strip() for x in re.split(r',(?![^\[]*\])', ops)]
                    a = set(parse_regs(o[1])) | set(parse_regs(o[2])); c = set(parse_regs(o[3].split()[0]))
                    if pv & a: req = max(req, raw)
                    if pv & c:
                        if c == pv and i.passes == n: pass
                        else: req = max(req, {4: 6, 8: 10}[n])
                    if (pv & set(i.dst)) and not (pv & c):
                        req = max(req, raw)
                else:
                    if i.kind in ('valu', 'trans', 'ds', 'vmem') and (pv & (vS | vD)): req = max(req, raw)
                if i.kind in ('valu', 'trans'):
                    ops = p.text.split(None, 1)[1]
                    o = [x.strip() for x in re.split(r',(?![^\[]*\])', ops)]
                    c = set(parse_regs(o[3].split()[0]))
                    if c & vD: req = max(req, {4: 3, 8: 7}[n])
            if p.kind == 'vmem' and 'store' in p.mn and ('x4' in p.mn or 'x3' in p.mn):
                if i.kind in ('valu', 'trans') and ({r for r in pS if r[0] == 'v'} & vD): req = max(req, 2)
                elif i.kind in ('ds', 'vmem', 'mfma') and ({r for r in pS if r[0] == 'v'} & vD): req = max(req, 1)
            if req > dist: need = max(need, req - dist)
        while need > 0:
            k = min(need, 16)
            nop = Ins(f's_nop {k - 1}')
            nop.region = i.region
            out.append(nop); hist.append(nop); need -= k
        out.append(i)
        hist.append(i)
        if len(hist) > 48: hist = hist[-48:]
    return out

def render(ins):
    s = []
    for i in ins:
        if i.kind == 'label': s.append(i.text)
        else: s.append('    ' + i.text)
    return '\n'.join(s) + '\n'

def finalize(prog):
    ins = insert_waits(prog.ins)
    ins = insert_nops(ins)
    return ins
```

```python
import sys, struct
from asmlib import *

NAME = "parallel_sum__linear_attn_block__glu_gated_swiglu__prompt"

WS_H    = 0x000000
WS_PART = 0xA00000
WS_ZB   = 0xB00000
WS_F1   = 0xC00000
WS_F2   = 0xC01000
WS_F3   = 0xC02000
WS_STAMP= 0xD00000
OOB     = 0x7F000000

SLOT = 16384
def slot(n): return n * SLOT
SCR = slot(9)
SCR_CS  = SCR
SCR_CSDUMP = SCR + 2048
SCR_ST  = SCR + 4096
SCR_RHO = SCR + 6144
SCR_ZR  = SCR + 6656
KVR_SLOT = 7
XSLOT0 = 4
C_SLOTS = [8, 4, 5, 6, 7, 0, 1, 2, 3, 9]

LOG2E = 1.4426950408889634
LN2 = 0.6931471805599453
def fhex(x): return "0x%08x" % struct.unpack('<I', struct.pack('<f', x))[0]

SRD_X, SRD_QKV, SRD_W1, SRD_W3, SRD_W2, SRD_WO, SRD_OUT, SRD_WS, SRD_DBG = [f"s[{4+4*i}:{7+4*i}]" for i in range(9)]
sW, sRB, sCG, sI, sJ, sP, sKAP = "s40", "s41", "s42", "s43", "s44", "s45", "s46"
sXo = "s47"
sWa, sWb = "s48", "s49"
sHo = "s50"
sNonce = "s51"
sT0, sT1, sT2, sT3 = "s52", "s53", "s54", "s55"
sMaskB = "s[56:57]"
sC2o, sC2oWo = "s58", "s59"
sF0, sF1, sF2 = "s60", "s61", "s62"
sM0b = "s63"
sRG, sCT = "s64", "s65"
sPartO = "s66"
sM0c = "s67"
sSave = "s[68:69]"
sHH, sPP = "s70", "s71"
sSpin = "s72"
sFh = "s73"
sTs = "s[74:75]"
sStampO = "s76"
sD0 = "s77"
sKQ, sMH = "s78", "s79"

vLane = 1
vL16 = 2
vDmaA = 3
vDmaB = 4
vDmaC = 5
vC1 = 6
vIC3 = 7
vRho = 8
vT = 9
vD = 12
vG3 = 0
vNB = 13
vCsR = 14
vCsW = 15
TMP = 16
WA = 24
XE = 32
SEL = 36
CSA = 40
WF = 48
NBUF = 4
ACC = [64, 96]
XF = 128
XDMA0 = ACC[1] + 0
XDMA1 = ACC[1] + 1
XRA = ACC[1] + 2
ST1a, ST1b, ST2a, ST2b = ACC[1] + 6, ACC[1] + 7, ACC[1] + 8, ACC[1] + 9
STT = ACC[1] + 10

CFG = dict(stop=None, stamps=False, LA=2, fill=5)

def stamp(idx, a=0, b=9):
    if not CFG['stamps']: return []
    return mk(f"""s_memrealtime {sTs}
        s_waitcnt lgkmcnt(0)
        v_mov_b32 v{a}, s74
        v_mov_b32 v{b}, {sStampO}
        buffer_store_dword v{a}, v{b}, {SRD_WS}, 0 offen offset:{idx*4}""", tag='stamp')

def prologue():
    o = mk(f"""
    s_load_dwordx16 s[80:95], s[0:1], 0
    s_load_dwordx4 s[96:99], s[0:1], 64
    v_lshrrev_b32 v{vT}, 6, v0
    v_and_b32 v{vLane}, 63, v0
    v_readfirstlane_b32 {sW}, v{vT}
    v_lshlrev_b32 v{vL16}, 4, v{vLane}
    s_and_b32 {sRB}, {sW}, 3
    s_lshr_b32 {sCG}, {sW}, 2
    s_xor_b32 {sKAP}, {sRB}, {sCG}
    s_and_b32 {sT0}, s2, 7
    s_lshr_b32 {sT1}, s2, 3
    s_and_b32 {sI}, {sT0}, 1
    s_lshl_b32 {sI}, {sI}, 3
    s_and_b32 {sT2}, {sT1}, 7
    s_add_u32 {sI}, {sI}, {sT2}
    s_lshr_b32 {sJ}, {sT0}, 1
    s_lshl_b32 {sJ}, {sJ}, 2
    s_lshr_b32 {sT2}, {sT1}, 3
    s_add_u32 {sJ}, {sJ}, {sT2}
    s_lshr_b32 {sP}, {sJ}, 1
    s_lshl_b32 {sRG}, {sT0}, 2
    s_add_u32 {sRG}, {sRG}, {sT2}
    s_and_b32 {sCT}, {sT1}, 7
    s_lshr_b32 {sHH}, s2, 3
    s_and_b32 {sPP}, s2, 7
    s_lshl_b32 {sM0b}, {sW}, 11
    s_mul_i32 {sT0}, {sP}, 224
    s_bitcmp1_b32 {sP}, 0
    s_cselect_b32 {sT1}, 96, 0
    s_cselect_b32 {sT2}, 32, 128
    s_cselect_b32 {sT3}, 0, 192
    s_add_u32 {sF0}, {sT0}, {sT1}
    s_add_u32 {sF1}, {sF0}, 64
    s_add_u32 {sF2}, {sT0}, {sT2}
    s_add_u32 {sFh}, {sT0}, {sT3}
    s_lshl_b32 {sXo}, {sI}, 17
    s_lshl_b32 {sT0}, {sW}, 14
    s_add_u32 {sXo}, {sXo}, {sT0}
    v_lshrrev_b32 v{vT}, 3, v{vLane}
    v_and_b32 v{vT+1}, 7, v{vLane}
    v_lshrrev_b32 v{vT+2}, 1, v{vT}
    v_xor_b32 v{vT+1}, v{vT+1}, v{vT+2}
    v_lshlrev_b32 v{vT+1}, 4, v{vT+1}
    v_lshlrev_b32 v{vT}, 10, v{vT}
    v_add_u32 v{XDMA0}, v{vT}, v{vT+1}
    v_xor_b32 v{XDMA1}, 64, v{XDMA0}
    s_waitcnt lgkmcnt(0)
    s_mov_b32 s4, s80
    s_mov_b32 s5, s81
    s_mov_b32 s6, 2097152
    s_mov_b32 s7, 0x20000
    s_mov_b32 s8, s82
    s_mov_b32 s9, s83
    s_mov_b32 s10, 1572864
    s_mov_b32 s11, 0x20000
    s_mov_b32 s12, s88
    s_mov_b32 s13, s89
    s_mov_b32 s14, 1835008
    s_mov_b32 s15, 0x20000
    s_mov_b32 s16, s90
    s_mov_b32 s17, s91
    s_mov_b32 s18, 1835008
    s_mov_b32 s19, 0x20000
    s_mov_b32 s20, s92
    s_mov_b32 s21, s93
    s_mov_b32 s22, 1835008
    s_mov_b32 s23, 0x20000
    s_mov_b32 s24, s84
    s_mov_b32 s25, s85
    s_mov_b32 s26, 524288
    s_mov_b32 s27, 0x20000
    s_mov_b32 s28, s94
    s_mov_b32 s29, s95
    s_mov_b32 s30, 2097152
    s_mov_b32 s31, 0x20000
    s_mov_b32 s32, s98
    s_mov_b32 s33, s99
    s_mov_b32 s34, 0x10000000
    s_mov_b32 s35, 0x20000
    s_mov_b32 s36, s96
    s_mov_b32 s37, s97
    s_mov_b32 s38, 256
    s_mov_b32 s39, 0x20000
    """)
    if CFG['stamps']:
        o += mk(f"""s_lshl_b32 {sStampO}, s2, 3
        s_add_u32 {sStampO}, {sStampO}, {sW}
        s_lshl_b32 {sStampO}, {sStampO}, 6
        s_add_u32 {sStampO}, {sStampO}, {WS_STAMP}""")
    return o

def dma(srd, voff, soff, m0base, m0add, tag):
    return mk(f"""s_add_u32 m0, {m0base}, {m0add}
    buffer_load_dwordx4 v{voff}, {srd}, {soff} offen lds""", tag=tag)

def x_dma(s):
    sl = XSLOT0 + (s & 3)
    o = mk(f"s_add_u32 {sD0}, {sXo}, {128*s}")
    o += dma(SRD_X, XDMA0, sD0, sM0b, slot(sl), f"X{s}")
    o += mk(f"s_add_u32 {sD0}, {sXo}, {128*s + 8*1024}")
    o += dma(SRD_X, XDMA1, sD0, sM0b, slot(sl) + 1024, f"X{s}")
    return o

class Pass:
    def __init__(self, kind, f=None):
        self.kind = kind
        self.f = f
        self.nblk = 2 if kind in ('F', 'KV') else 1
        self.nstage = 8 if kind in ('F', 'KV') else 4
        self.kps = 4 if kind in ('F', 'KV') else 8
        self.orient = 'N' if kind == 'KV' else 'T'

def w_dma(ps, s, sl, tag):
    o = []
    if ps.kind == 'F':
        o += mk(f"s_add_u32 {sD0}, {sWa}, {64*s*3584}")
        o += dma(SRD_W1, vDmaA, sD0, sM0b, slot(sl), tag)
        o += dma(SRD_W3, vDmaB, sD0, sM0b, slot(sl) + 1024, tag)
    elif ps.kind == 'KV':
        o += mk(f"s_add_u32 {sD0}, {sWa}, {64*s*3072}")
        o += dma(SRD_QKV, vDmaA, sD0, sM0b, slot(sl), tag)
        o += mk(f"s_add_u32 {sD0}, {sWa}, {64*s*3072 + 1024}")
        o += dma(SRD_QKV, vDmaA, sD0, sM0b, slot(sl) + 1024, tag)
    elif ps.kind == 'Q':
        o += mk(f"s_add_u32 {sD0}, {sWa}, {128*s*3072}")
        o += dma(SRD_QKV, vDmaA, sD0, sM0b, slot(sl), tag)
        o += mk(f"s_add_u32 {sD0}, {sWa}, {128*s*3072 + 8*3072}")
        o += dma(SRD_QKV, vDmaA, sD0, sM0b, slot(sl) + 1024, tag)
    elif ps.kind == 'Fh':
        o += mk(f"s_add_u32 {sD0}, {sWa}, {128*s*3584}")
        o += dma(SRD_W1, vDmaA, sD0, sM0b, slot(sl), tag)
        o += dma(SRD_W3, vDmaB, sD0, sM0b, slot(sl) + 1024, tag)
    return o

def setup_dma(ps):
    if ps.kind == 'F':
        return mk(f"""v_lshrrev_b32 v{vDmaA}, 3, v{vLane}
        v_and_b32 v{vDmaB}, 7, v{vLane}
        v_and_b32 v{vD}, 2, v{vDmaA}
        v_xor_b32 v{vDmaB}, v{vDmaB}, v{vD}
        v_lshlrev_b32 v{vDmaB}, 4, v{vDmaB}
        v_mul_u32_u24 v{vDmaA}, 3584, v{vDmaA}
        v_add_u32 v{vDmaA}, v{vDmaA}, v{vDmaB}
        v_xor_b32 v{vDmaB}, 64, v{vDmaA}
        s_mul_i32 {sWa}, {sW}, {8*3584}
        s_lshl_b32 {sD0}, {ps.f}, 1
        s_add_u32 {sWa}, {sWa}, {sD0}""")
    if ps.kind in ('KV', 'Q'):
        o = mk(f"""v_lshrrev_b32 v{vDmaA}, 3, v{vLane}
        v_and_b32 v{vDmaB}, 7, v{vLane}
        v_and_b32 v{vD}, 2, v{vDmaA}
        v_lshlrev_b32 v{vD}, 1, v{vD}
        v_xor_b32 v{vDmaB}, v{vDmaB}, v{vD}
        v_lshlrev_b32 v{vDmaB}, 4, v{vDmaB}
        v_mul_u32_u24 v{vDmaA}, 3072, v{vDmaA}
        v_add_u32 v{vDmaA}, v{vDmaA}, v{vDmaB}""")
        if ps.kind == 'KV':
            o += mk(f"""s_mul_i32 {sWa}, {sW}, {8*3072}
            s_lshl_b32 {sD0}, {sP}, 7
            s_add_u32 {sWa}, {sWa}, {sD0}
            s_add_u32 {sWa}, {sWa}, 1024""")
        else:
            o += mk(f"""s_mul_i32 {sWa}, {sW}, {16*3072}
            s_lshl_b32 {sD0}, {sP}, 7
            s_add_u32 {sWa}, {sWa}, {sD0}""")
        return o
    if ps.kind == 'Fh':
        return mk(f"""v_lshrrev_b32 v{vDmaA}, 2, v{vLane}
        v_and_b32 v{vDmaB}, 3, v{vLane}
        v_lshlrev_b32 v{vDmaB}, 4, v{vDmaB}
        v_mul_u32_u24 v{vDmaA}, 3584, v{vDmaA}
        v_add_u32 v{vDmaA}, v{vDmaA}, v{vDmaB}
        v_xor_b32 v{vDmaB}, 32, v{vDmaA}
        s_mul_i32 {sWa}, {sW}, {16*3584}
        s_lshl_b32 {sD0}, {ps.f}, 1
        s_add_u32 {sWa}, {sWa}, {sD0}""")

def setup_read_base(ps):
    t0, t1, t2, t3 = vT, vNB, vT + 1, vT + 2
    o = mk(f"""v_lshrrev_b32 v{t0}, 2, v{vLane}
    v_and_b32 v{t0}, 3, v{t0}
    v_and_b32 v{t1}, 3, v{vLane}
    v_lshlrev_b32 v{t1}, 3, v{t1}
    v_lshrrev_b32 v{t2}, 4, v{vLane}
    v_and_b32 v{t2}, 1, v{t2}
    v_lshrrev_b32 v{t3}, 5, v{vLane}""")
    if ps.kind == 'F':
        o += mk(f"""v_lshlrev_b32 v{t3}, 11, v{t3}
        v_add_u32 v{t1}, v{t1}, v{t3}
        v_lshlrev_b32 v{t3}, 10, v{t2}
        v_add_u32 v{t1}, v{t1}, v{t3}
        v_lshlrev_b32 v{t3}, 7, v{t0}
        v_add_u32 v{t1}, v{t1}, v{t3}
        v_lshrrev_b32 v{t0}, 1, v{t0}
        v_lshlrev_b32 v{t2}, 1, v{t2}
        v_or_b32 v{t0}, v{t0}, v{t2}
        s_lshl_b32 {sT3}, {sCG}, 1
        v_xor_b32 v{t0}, {sT3}, v{t0}
        v_lshlrev_b32 v{t0}, 5, v{t0}
        v_add_u32 v{t1}, v{t1}, v{t0}
        s_lshl_b32 {sT3}, {sKAP}, 12
        v_add_u32 v{t1}, {sT3}, v{t1}""")
    elif ps.kind in ('KV', 'Q'):
        sh_hf, sh_k = (11, 12) if ps.kind == 'KV' else (10, 11)
        o += mk(f"""v_lshlrev_b32 v{t3}, {sh_hf}, v{t3}
        v_add_u32 v{t1}, v{t1}, v{t3}
        v_lshlrev_b32 v{t3}, 5, v{t2}
        v_add_u32 v{t1}, v{t1}, v{t3}
        v_lshlrev_b32 v{t3}, 7, v{t0}
        v_add_u32 v{t1}, v{t1}, v{t3}
        v_lshrrev_b32 v{t0}, 1, v{t0}
        v_xor_b32 v{t0}, {sCG}, v{t0}
        v_lshlrev_b32 v{t0}, 6, v{t0}
        v_add_u32 v{t1}, v{t1}, v{t0}
        s_lshl_b32 {sT3}, {sKAP}, {sh_k}
        v_add_u32 v{t1}, {sT3}, v{t1}""")
    elif ps.kind == 'Fh':
        o += mk(f"""v_lshlrev_b32 v{t3}, 9, v{t3}
        v_add_u32 v{t1}, v{t1}, v{t3}
        v_lshlrev_b32 v{t3}, 10, v{t2}
        v_add_u32 v{t1}, v{t1}, v{t3}
        v_lshlrev_b32 v{t3}, 6, v{t0}
        v_add_u32 v{t1}, v{t1}, v{t3}
        v_xor_b32 v{t2}, {sCG}, v{t2}
        v_lshlrev_b32 v{t2}, 5, v{t2}
        v_add_u32 v{t1}, v{t1}, v{t2}
        s_lshl_b32 {sT3}, {sKAP}, 11
        v_add_u32 v{t1}, {sT3}, v{t1}""")
    return o

def read_addr_xor(ps, n, b):
    if ps.kind == 'F':   c = (n << 12) | (32 * b)
    elif ps.kind == 'KV': c = (n << 12) | (1024 * b)
    else: c = n << 11
    return mk(f"v_xor_b32 v{WA + 4*b + n}, {c}, v{vNB}")

def w_read(ps, sl, n, b, buf):
    d = WF + 4 * buf
    if ps.kind in ('F', 'KV'):
        a = WA + 4 * b + n; off = slot(sl); sec = 512
    elif ps.kind == 'Q':
        a = WA + (n & 3); off = slot(sl) + (n >> 2) * 8192; sec = 512
    else:
        a = WA + (n & 3); off = slot(sl) + (n >> 2) * 8192; sec = 256
    assert off + sec < 65536
    return mk(f"""ds_read_b64_tr_b16 v[{d}:{d+1}], v{a} offset:{off}
    ds_read_b64_tr_b16 v[{d+2}:{d+3}], v{a} offset:{off+sec}""")

def stats_ops(xs):
    o = []
    for r in range(4):
        x = XF + 4 * xs + r
        a, b = STT + 2 * (r & 1), STT + 2 * (r & 1) + 1
        o += mk(f"""v_lshlrev_b32 v{a}, 16, v{x}
        v_and_b32 v{b}, 0xffff0000, v{x}
        v_add_f32 v{ST1a}, v{ST1a}, v{a}
        v_add_f32 v{ST1b}, v{ST1b}, v{b}
        v_fmac_f32 v{ST2a}, v{a}, v{a}
        v_fmac_f32 v{ST2b}, v{b}, v{b}""")
    return o

def stats_publish():
    a, b, c = STT, STT + 1, STT + 2
    return mk(f"""v_add_f32 v{ST1a}, v{ST1a}, v{ST1b}
    v_add_f32 v{ST2a}, v{ST2a}, v{ST2b}
    v_and_b32 v{c}, 31, v{vLane}
    v_mov_b32 v{ST1b}, v{ST1a}
    v_mov_b32 v{ST2b}, v{ST2a}
    s_lshl_b32 {sT2}, {sCG}, 7
    s_lshl_b32 {sT3}, {sRB}, 5
    v_permlane32_swap_b32 v{ST1a}, v{ST1b}
    v_permlane32_swap_b32 v{ST2a}, v{ST2b}
    s_add_u32 {sT2}, {sT2}, {sT3}
    v_add_u32 v{c}, {sT2}, v{c}
    v_add_f32 v{ST1a}, v{ST1a}, v{ST1b}
    v_add_f32 v{ST1b}, v{ST2a}, v{ST2b}
    v_lshlrev_b32 v{c}, 3, v{c}
    v_add_u32 v{c}, {SCR_ST}, v{c}
    ds_write_b64 v{c}, v[{ST1a}:{ST1b}]""")

def stats_finish():
    t = TMP
    return mk(f"""v_and_b32 v{t+6}, 31, v{vLane}
    s_lshl_b32 {sT3}, {sRB}, 5
    v_add_u32 v{t+6}, {sT3}, v{t+6}
    v_lshlrev_b32 v{t+7}, 3, v{t+6}
    v_add_u32 v{t+7}, {SCR_ST}, v{t+7}
    ds_read_b64 v[{t}:{t+1}], v{t+7}
    ds_read_b64 v[{t+2}:{t+3}], v{t+7} offset:1024
    v_lshlrev_b32 v{t+6}, 2, v{t+6}
    v_add_u32 v{t+6}, {SCR_RHO}, v{t+6}
    v_add_f32 v{t}, v{t}, v{t+2}
    v_add_f32 v{t+1}, v{t+1}, v{t+3}
    v_mul_f32 v{t}, {fhex(1/512)}, v{t}
    v_mul_f32 v{t+1}, {fhex(1/512)}, v{t+1}
    v_fma_f32 v{t+1}, -v{t}, v{t}, v{t+1}
    v_max_f32 v{t+1}, 0, v{t+1}
    v_add_f32 v{t+1}, {fhex(1e-5)}, v{t+1}
    v_rsq_f32 v{vRho}, v{t+1}
    v_cvt_pk_bf16_f32 v{t+2}, -v{t}, -v{t}
    v_mul_f32 v{vC1}, {fhex(-LOG2E)}, v{vRho}
    v_mul_f32 v{t+1}, v{t+1}, v{vRho}
    v_mul_f32 v{vIC3}, {fhex(-LOG2E)}, v{t+1}
    v_and_b32 v{t+3}, 0xffff0000, v{t+2}
    v_sub_f32 v{t+3}, -v{t}, v{t+3}
    v_cvt_pk_bf16_f32 v{XE}, -v{t}, v{t+3}
    v_cvt_pk_bf16_f32 v{XE+1}, -v{t}, 0
    v_cmp_gt_u32 vcc, 32, v{vLane}
    v_sub_f32 v{t+4}, 0, v{vC1}
    v_cndmask_b32 v{XE}, 0, v{XE}, vcc
    v_cndmask_b32 v{XE+1}, 0, v{XE+1}, vcc
    v_mov_b32 v{XE+2}, 0
    v_mov_b32 v{XE+3}, 0
    ds_write_b32 v{t+6}, v{t+4}""")

def cs_publish(ps):
    o = []
    for b in range(ps.nblk):
        o += mk(f"ds_write_b32 v{vCsW}, v{CSA + 4*b} offset:{512*b}")
    return o

def ext_ops(ps, accb):
    o = []
    t = TMP
    for b in range(ps.nblk):
        ab = accb + 16 * b
        o += mk(f"""ds_read_b128 v[{t}:{t+3}], v{vCsR} offset:{512*b}
        v_add_f32 v{t}, v{t}, v{t+1}
        v_add_f32 v{t+2}, v{t+2}, v{t+3}
        v_mov_b32 v{t+6}, 0
        v_add_f32 v{t}, v{t}, v{t+2}
        v_mov_b32 v{t+7}, 0
        v_cvt_pk_bf16_f32 v{t+4}, v{t}, v{t}
        v_and_b32 v{t+1}, 0xffff0000, v{t+4}
        v_sub_f32 v{t}, v{t}, v{t+1}
        v_cvt_pk_bf16_f32 v{t+5}, v{t}, 0""")
        if ps.orient == 'T':
            o += mk(f"v_mfma_f32_32x32x16_bf16 v[{ab}:{ab+15}], v[{t+4}:{t+7}], v[{XE}:{XE+3}], v[{ab}:{ab+15}]")
        else:
            o += mk(f"v_mfma_f32_32x32x16_bf16 v[{ab}:{ab+15}], v[{XE}:{XE+3}], v[{t+4}:{t+7}], v[{ab}:{ab+15}]")
    return o

def h_store(ab, ks_expr):
    return mk(ks_expr) + mk(f"buffer_store_dwordx4 v[{ab}:{ab+3}], v{vL16}, {SRD_WS}, {sT2} offen sc1", tag='H')

def f_epi(ab, ks_expr):
    o = []
    T = TMP
    for g in range(2):
        js = range(4 * g, 4 * g + 4)
        for j in js: o += mk(f"v_mul_f32 v{ab+j}, v{vC1}, v{ab+j}")
        for j in js: o += mk(f"v_exp_f32 v{T+(j&3)}, v{ab+j}")
        for j in js: o += mk(f"v_mul_f32 v{ab+8+j}, v{ab+8+j}, v{ab+j}")
        for j in js: o += mk(f"v_fma_f32 v{T+(j&3)}, v{T+(j&3)}, v{vIC3}, v{vIC3}")
        for j in js: o += mk(f"v_rcp_f32 v{T+(j&3)}, v{T+(j&3)}")
        for j in js: o += mk(f"v_mul_f32 v{ab+j}, v{ab+8+j}, v{T+(j&3)}")
    for k in range(4): o += mk(f"v_cvt_pk_bf16_f32 v{ab+k}, v{ab+2*k}, v{ab+2*k+1}")
    o += h_store(ab, ks_expr)
    return o

def f_ks(fs, b, nb):
    return f"""s_lshr_b32 {sT2}, {fs}, 4
    s_mul_i32 {sT3}, {sCG}, {nb}
    s_add_u32 {sT2}, {sT2}, {sT3}
    s_add_u32 {sT2}, {sT2}, {b}
    s_lshl_b32 {sT2}, {sT2}, 10
    s_add_u32 {sT2}, {sT2}, {sHo}"""

def q_ks(hb):
    return f"""s_lshl_b32 {sT2}, {sP}, 2
    s_lshl_b32 {sT3}, {sCG}, 1
    s_add_u32 {sT2}, {sT2}, {sT3}
    s_add_u32 {sT2}, {sT2}, {112 + hb}
    s_lshl_b32 {sT2}, {sT2}, 10
    s_add_u32 {sT2}, {sT2}, {sHo}"""

def q_epi(ab):
    o = []
    T = TMP
    for g in range(4):
        rs = range(4 * g, 4 * g + 4)
        for r in rs: o += mk(f"v_min_f32 v{T+(r&3)}, 0, v{ab+r}")
        for r in rs: o += mk(f"v_mul_f32 v{T+(r&3)}, -v{vC1}, v{T+(r&3)}")
        for r in rs: o += mk(f"v_exp_f32 v{T+(r&3)}, v{T+(r&3)}")
        for r in rs: o += mk(f"v_max_f32 v{ab+r}, 0, v{ab+r}")
        for r in rs: o += mk(f"v_fma_f32 v{ab+r}, v{ab+r}, v{vRho}, v{T+(r&3)}")
        for r in rs: o += mk(f"v_add_f32 v{ab+r}, {fhex(1e-6)}, v{ab+r}")
    for k in range(4): o += mk(f"v_cvt_pk_bf16_f32 v{ab+k}, v{ab+2*k}, v{ab+2*k+1}")
    o += h_store(ab, q_ks(0))
    for k in range(4): o += mk(f"v_cvt_pk_bf16_f32 v{ab+8+k}, v{ab+8+2*k}, v{ab+8+2*k+1}")
    o += h_store(ab + 8, q_ks(1))
    return o

def kv_epi_part1(accb):
    K, V = accb, accb + 16
    T = TMP
    o = []
    o += mk(f"""v_lshrrev_b32 v{vT}, 5, v{vLane}
    v_lshlrev_b32 v{vT}, 4, v{vT}
    s_lshl_b32 {sT3}, {sRB}, 7
    v_add_u32 v{vT}, {sT3}, v{vT}
    v_add_u32 v{vT}, {SCR_RHO}, v{vT}""")
    for g in range(4):
        rs = range(4 * g, 4 * g + 4)
        o += mk(f"ds_read_b128 v[{T}:{T+3}], v{vT} offset:{32*g}")
        for r in rs: o += mk(f"v_mul_f32 v{K+r}, v{K+r}, v{T+(r&3)}")
        for r in rs: o += mk(f"v_mul_f32 v{V+r}, v{V+r}, v{T+(r&3)}")
        for r in rs: o += mk(f"v_min_f32 v{T+4+(r&3)}, 0, v{K+r}")
        for r in rs: o += mk(f"v_exp_f32 v{T+4+(r&3)}, v{T+4+(r&3)}")
        for r in rs: o += mk(f"v_max_f32 v{K+r}, 0, v{K+r}")
        for r in rs: o += mk(f"v_fma_f32 v{K+r}, v{K+r}, v{vT+1}, v{T+4+(r&3)}")
        for r in rs: o += mk(f"v_add_f32 v{K+r}, {fhex(1e-6)}, v{K+r}")
    o = mk(f"v_mov_b32 v{vT+1}, {fhex(LN2)}") + o
    o += mk(f"v_add_f32 v{T}, v{K}, v{K+1}")
    o += mk(f"v_add_f32 v{T+1}, v{K+2}, v{K+3}")
    for r in range(4, 16, 2):
        o += mk(f"v_add_f32 v{T}, v{T}, v{K+r}")
        o += mk(f"v_add_f32 v{T+1}, v{T+1}, v{K+r+1}")
    o += mk(f"v_add_f32 v{T}, v{T}, v{T+1}")
    for k in range(8): o += mk(f"v_cvt_pk_bf16_f32 v{K+k}, v{K+2*k}, v{K+2*k+1}")
    for k in range(8): o += mk(f"v_cvt_pk_bf16_f32 v{K+8+k}, v{V+2*k}, v{V+2*k+1}")
    o += mk(f"""v_mov_b32 v{T+1}, v{T}
    v_mfma_f32_32x32x16_bf16 v[{V}:{V+15}], v[{K}:{K+3}], v[{K+8}:{K+11}], 0
    v_permlane32_swap_b32 v{T}, v{T+1}
    v_mfma_f32_32x32x16_bf16 v[{V}:{V+15}], v[{K+4}:{K+7}], v[{K+12}:{K+15}], v[{V}:{V+15}]
    v_add_f32 v{T}, v{T}, v{T+1}""")
    o += mk(f"""v_and_b32 v{T+1}, 31, v{vLane}
    v_lshlrev_b32 v{T+1}, 2, v{T+1}
    s_lshl_b32 {sT3}, {sW}, 7
    v_add_u32 v{T+1}, {sT3}, v{T+1}
    v_add_u32 v{T+1}, {SCR_ZR}, v{T+1}
    ds_write_b32 v{T+1}, v{T}""")
    for r in range(8): o += mk(f"v_cndmask_b32 v{K+r}, v{V+r}, v{V+8+r}, {sMaskB}")
    o += mk(f"""v_lshlrev_b32 v{T+1}, 5, v{vLane}
    v_add_u32 v{T+1}, {sM0b}, v{T+1}
    v_add_u32 v{T+1}, {slot(KVR_SLOT)}, v{T+1}
    ds_write_b128 v{T+1}, v[{K}:{K+3}]
    ds_write_b128 v{T+1}, v[{K+4}:{K+7}] offset:16""")
    return o

def kv_epi_part2():
    T = TMP
    o = mk(f"""v_lshlrev_b32 v{vT}, 5, v{vLane}
    s_lshl_b32 {sT3}, {sCG}, 13
    s_lshl_b32 {sT2}, {sRB}, 3
    s_add_u32 {sT3}, {sT3}, {sT2}
    s_add_u32 {sT3}, {sT3}, {slot(KVR_SLOT)}
    v_add_u32 v{vT}, {sT3}, v{vT}
    ds_read_b64 v[{T}:{T+1}], v{vT}
    ds_read_b64 v[{T+2}:{T+3}], v{vT} offset:2048
    ds_read_b64 v[{T+4}:{T+5}], v{vT} offset:4096
    ds_read_b64 v[{T+6}:{T+7}], v{vT} offset:6144
    v_and_b32 v{vT+1}, 15, v{vLane}
    v_lshlrev_b32 v{vT+1}, 6, v{vT+1}
    v_lshrrev_b32 v{vT+2}, 4, v{vLane}
    v_and_b32 v{vT+2}, 1, v{vT+2}
    v_mul_u32_u24 v{vG3}, 1152, v{vT+2}
    v_add_u32 v{vT+1}, v{vT+1}, v{vG3}
    v_lshrrev_b32 v{vT+2}, 5, v{vLane}
    v_lshlrev_b32 v{vT+2}, 5, v{vT+2}
    v_add_u32 v{vT+1}, v{vT+1}, v{vT+2}
    s_lshl_b32 {sT2}, {sRB}, 3
    v_add_u32 v{vT+1}, {sT2}, v{vT+1}
    v_add_f32 v{T}, v{T}, v{T+2}
    v_add_f32 v{T+1}, v{T+1}, v{T+3}
    v_add_f32 v{T+4}, v{T+4}, v{T+6}
    v_add_f32 v{T+5}, v{T+5}, v{T+7}
    v_add_f32 v{T}, v{T}, v{T+4}
    v_add_f32 v{T+1}, v{T+1}, v{T+5}
    v_mul_f32 v{T}, {fhex(LN2)}, v{T}
    v_mul_f32 v{T+1}, {fhex(LN2)}, v{T+1}
    buffer_store_dwordx2 v[{T}:{T+1}], v{vT+1}, {SRD_WS}, {sPartO} offen sc1""", tag='PART')
    o += mk(f"""v_and_b32 v{vT}, 31, v{vLane}
    v_lshlrev_b32 v{vT+2}, 2, v{vT}
    s_lshl_b32 {sT3}, {sCG}, 9
    s_add_u32 {sT3}, {sT3}, {SCR_ZR}
    v_add_u32 v{vT+2}, {sT3}, v{vT+2}
    ds_read_b32 v{T+2}, v{vT+2}
    ds_read_b32 v{T+3}, v{vT+2} offset:128
    ds_read_b32 v{T+4}, v{vT+2} offset:256
    ds_read_b32 v{T+5}, v{vT+2} offset:384
    v_lshrrev_b32 v{vT+1}, 4, v{vT}
    v_mul_u32_u24 v{vT+1}, 1152, v{vT+1}
    v_and_b32 v{vT+2}, 3, v{vT}
    v_lshrrev_b32 v{vG3}, 3, v{vT}
    v_and_b32 v{vG3}, 1, v{vG3}
    v_lshlrev_b32 v{vG3}, 2, v{vG3}
    v_add_u32 v{vT+2}, v{vT+2}, v{vG3}
    v_lshrrev_b32 v{vG3}, 2, v{vT}
    v_and_b32 v{vG3}, 1, v{vG3}
    v_lshlrev_b32 v{vG3}, 3, v{vG3}
    v_add_u32 v{vT+2}, v{vT+2}, v{vG3}
    v_lshlrev_b32 v{vT+2}, 2, v{vT+2}
    v_add_u32 v{vT+1}, v{vT+1}, v{vT+2}
    v_add_u32 v{vT+1}, 1024, v{vT+1}
    s_cmp_eq_u32 {sRB}, 0
    s_cselect_b32 {sT3}, 32, 0
    v_mov_b32 v{vT+2}, {OOB}
    v_cmp_gt_u32 vcc, {sT3}, v{vLane}
    v_add_f32 v{T+2}, v{T+2}, v{T+3}
    v_add_f32 v{T+4}, v{T+4}, v{T+5}
    v_cndmask_b32 v{vT+1}, v{vT+2}, v{vT+1}, vcc
    v_add_f32 v{T+2}, v{T+2}, v{T+4}
    buffer_store_dword v{T+2}, v{vT+1}, {SRD_WS}, {sPartO} offen sc1""", tag='PART')
    return o

def flag_store(off_setup, uid, wave=0):
    lab = f"L_fl_{uid}"
    o = mk(f"""s_cmp_lg_u32 {sW}, {wave}
    s_cbranch_scc1 {lab}""")
    body = mk(off_setup)
    body += mk(f"""v_mov_b32 v{vT}, {sNonce}
    v_mov_b32 v{vT+1}, 0
    s_mov_b64 {sSave}, exec
    s_mov_b64 exec, 1
    buffer_store_dword v{vT}, v{vT+1}, {SRD_WS}, {sT2} offen sc1
    s_mov_b64 exec, {sSave}""", tag='FLAG')
    o += optional(body)
    o += mk(f"{lab}:")
    return o

def c_dma(c):
    sl = C_SLOTS[c % 10]
    if c < 14:
        srd, base, add = SRD_W2, sC2o, 32 * c * 1024
    else:
        srd, base, add = SRD_WO, sC2oWo, 32 * (c - 14) * 1024
    o = mk(f"s_add_u32 {sD0}, {base}, {add}")
    o += dma(srd, vDmaC, sD0, sM0c, slot(sl), f"C{c}")
    o += mk(f"s_add_u32 {sD0}, {base}, {add + 8*1024}")
    o += dma(srd, vDmaC, sD0, sM0c, slot(sl) + 1024, f"C{c}")
    return o

def nonce_gen(uid):
    o = mk(f"""s_or_b32 {sT0}, s2, {sW}
    s_cmp_lg_u32 {sT0}, 0
    s_cbranch_scc1 L_nononce_{uid}""")
    o += optional(mk(f"""s_memrealtime {sTs}
    s_waitcnt lgkmcnt(0)
    s_or_b32 {sT0}, s74, 1
    v_mov_b32 v{vT}, {sT0}
    v_mov_b32 v{vT+1}, 0
    buffer_store_dword v{vT}, v{vT+1}, {SRD_DBG}, 0 offen sc1""", tag='NONCE'))
    o += mk(f"L_nononce_{uid}:")
    return o

def nonce_load():
    return mk(f"v_mov_b32 v{vT}, 0") + mk(f"buffer_load_dword v{vNB}, v{vT}, {SRD_DBG}, 0 offen sc1", tag='NL')

def nonce_check(uid):
    o = mk(f"""v_readfirstlane_b32 {sNonce}, v{vNB}
    s_mov_b32 {sSpin}, 0
    s_cmp_lg_u32 {sNonce}, 0
    s_cbranch_scc1 L_nok_{uid}""")
    o += optional(mk(f"""L_nloop_{uid}:
    v_mov_b32 v{vT}, 0
    buffer_load_dword v{vNB}, v{vT}, {SRD_DBG}, 0 offen sc1
    s_waitcnt vmcnt(0)
    v_readfirstlane_b32 {sNonce}, v{vNB}
    s_add_u32 {sSpin}, {sSpin}, 1
    s_cmp_gt_u32 {sSpin}, 0x40000
    s_cbranch_scc1 L_nok_{uid}
    s_cmp_eq_u32 {sNonce}, 0
    s_cbranch_scc1 L_nloop_{uid}"""))
    o += mk(f"L_nok_{uid}:")
    return o

def atomize(lst):
    out = []
    i = 0
    n = len(lst)
    while i < n:
        x = lst[i]
        if x.kind == 'salu' and x.mn.startswith(('s_cmp', 's_bitcmp')):
            j = i + 1
            while j < n and not (('x', 'scc') in lst[j].src): j += 1
            assert j < n
            if lst[j].kind == 'branch':
                lab = lst[j].text.split()[1] + ':'
                while lst[j].text != lab: j += 1
            else:
                while j + 1 < n and lst[j + 1].mn.startswith('s_cselect'): j += 1
            out.append(lst[i:j + 1]); i = j + 1
        else:
            out.append([x]); i += 1
    return out

def weight(atom):
    w = 0
    for i in atom:
        if i.kind in ('pseudo', 'label'): continue
        if i.kind == 'trans': w += 2
        elif i.kind == 'salu': w += 0.5
        elif i.kind == 'mfma': w += 4
        else: w += 1
    return w

class Gate:
    def __init__(self, idx): self.idx = idx

class Emitter:
    def __init__(self):
        self.out = []
        self.dq = []
        self.fq = []
        self.cur = -1
    def gate(self, idx): self.fq.append(Gate(idx))
    def e(self, lst): self.out.extend(lst)
    def addf(self, lst): self.fq.extend(atomize(lst))
    def addd(self, lst): self.dq.extend(atomize(lst))
    def fill(self, budget, dbudget=3):
        w = 0
        while self.dq and w < dbudget:
            a = self.dq.pop(0); self.out.extend(a); w += weight(a)
        w = 0
        while self.fq and w < budget:
            if isinstance(self.fq[0], Gate):
                if self.cur >= self.fq[0].idx: self.fq.pop(0); continue
                break
            a = self.fq.pop(0); self.out.extend(a); w += weight(a)
    def flush(self):
        self.flush_d(); self.flush_f()
    def flush_f(self):
        while self.fq:
            a = self.fq.pop(0)
            if isinstance(a, Gate):
                assert self.cur >= a.idx, "flush through unsatisfied gate"
                continue
            self.out.extend(a)
    def flush_d(self):
        while self.dq: self.out.extend(self.dq.pop(0))

def barrier():
    return mk("s_waitcnt lgkmcnt(0)\ns_barrier")

def p1(typ):
    E = Emitter()
    if typ == 'A':
        passes = [Pass('F', sF0), Pass('F', sF1), Pass('Q')]
    else:
        passes = [Pass('KV'), Pass('F', sF2), Pass('Fh', sFh)]
    stages = []
    for pi, ps in enumerate(passes):
        for s in range(ps.nstage): stages.append((pi, s))
    NST = len(stages)
    first_stage = {0: 0, 1: 8, 2: 16}
    items = []
    for t, (pi, s) in enumerate(stages):
        ps = passes[pi]
        for n in range(ps.kps):
            for b in range(ps.nblk): items.append((pi, s, t, n, b))
    LA = CFG['LA']
    E.e(setup_dma(passes[0]))
    for s in range(4):
        E.e(x_dma(s))
        E.e(w_dma(passes[0], s, s, f"W{s}"))
    E.e(nonce_gen(typ))
    t0, t1, t2 = vT, vT + 1, vT + 2
    E.e(mk(f"""
    s_lshl_b32 {sT0}, {sI}, 2
    s_add_u32 {sT0}, {sT0}, {sRB}
    s_mul_i32 {sHo}, {sT0}, {144*1024}
    s_add_u32 {sHo}, {sHo}, {WS_H}
    s_mov_b32 s56, 0xffff0000
    s_mov_b32 s57, 0xffff0000
    s_mul_i32 {sPartO}, {sI}, 36864
    s_lshl_b32 {sT0}, {sP}, 2
    s_lshl_b32 {sT1}, {sCG}, 1
    s_add_u32 {sT0}, {sT0}, {sT1}
    s_mul_i32 {sT0}, {sT0}, 1152
    s_add_u32 {sPartO}, {sPartO}, {sT0}
    s_add_u32 {sPartO}, {sPartO}, {WS_PART}
    s_and_b32 {sKQ}, {sW}, 3
    s_lshr_b32 {sMH}, {sW}, 2
    s_lshl_b32 {sM0c}, {sKQ}, 12
    s_lshl_b32 {sT0}, {sMH}, 11
    s_add_u32 {sM0c}, {sM0c}, {sT0}
    s_lshl_b32 {sT1}, {sMH}, 14
    s_lshl_b32 {sT2}, {sCT}, 7
    s_add_u32 {sT1}, {sT1}, {sT2}
    s_mul_i32 {sC2o}, {sKQ}, {448*1024}
    s_add_u32 {sC2o}, {sC2o}, {sT1}
    s_lshl_b32 {sC2oWo}, {sKQ}, 17
    s_add_u32 {sC2oWo}, {sC2oWo}, {sT1}
    v_lshrrev_b32 v{t0}, 3, v{vLane}
    v_and_b32 v{t1}, 7, v{vLane}
    v_and_b32 v{t2}, 2, v{t0}
    v_lshlrev_b32 v{t2}, 1, v{t2}
    v_xor_b32 v{t1}, v{t1}, v{t2}
    v_lshlrev_b32 v{t1}, 4, v{t1}
    v_lshlrev_b32 v{t0}, 10, v{t0}
    v_add_u32 v{vDmaC}, v{t0}, v{t1}
    """))
    E.e(mk(f"""
    v_and_b32 v{t0}, 31, v{vLane}
    v_lshrrev_b32 v{t1}, 1, v{t0}
    v_and_b32 v{t1}, 7, v{t1}
    v_lshrrev_b32 v{t2}, 5, v{vLane}
    s_lshl_b32 {sT0}, {sKAP}, 1
    v_xor_b32 v{t2}, {sT0}, v{t2}
    v_xor_b32 v{t1}, v{t1}, v{t2}
    v_lshlrev_b32 v{t1}, 4, v{t1}
    s_lshl_b32 {sT0}, {sRB}, 5
    v_add_u32 v{t0}, {sT0}, v{t0}
    v_lshlrev_b32 v{t0}, 7, v{t0}
    v_add_u32 v{t0}, v{t0}, v{t1}
    v_add_u32 v{t0}, {slot(XSLOT0)}, v{t0}
    v_mov_b32 v{XRA}, v{t0}
    v_xor_b32 v{XRA+1}, 32, v{t0}
    v_xor_b32 v{XRA+2}, 64, v{t0}
    v_xor_b32 v{XRA+3}, 96, v{t0}
    v_mov_b32 v{ST1a}, 0
    v_mov_b32 v{ST1b}, 0
    v_mov_b32 v{ST2a}, 0
    v_mov_b32 v{ST2b}, 0
    """))
    E.e(mk(f"""
    v_and_b32 v{t0}, 15, v{vLane}
    v_lshrrev_b32 v{t1}, 4, v{vLane}
    v_and_b32 v{t1}, 1, v{t1}
    v_lshlrev_b32 v{t1}, 2, v{t1}
    v_cmp_eq_u32 vcc, v{t0}, v{t1}
    v_mov_b32 v{t2}, 0x3f803f80
    v_and_b32 v{t0}, 31, v{vLane}
    v_cndmask_b32 v{SEL}, 0, v{t2}, vcc
    s_lshl_b32 {sT0}, {sCG}, 6
    v_add_u32 v{t0}, {sT0}, v{t0}
    v_mov_b32 v{SEL+1}, v{SEL}
    v_lshlrev_b32 v{t0}, 4, v{t0}
    v_mov_b32 v{SEL+2}, v{SEL}
    v_add_u32 v{vCsR}, {SCR_CS}, v{t0}
    v_mov_b32 v{SEL+3}, v{SEL}
    s_lshl_b32 {sT0}, {sRB}, 2
    v_add_u32 v{vCsW}, {sT0}, v{vCsR}
    v_mov_b32 v{t1}, {SCR_CSDUMP}
    v_cmp_gt_u32 vcc, 32, v{vLane}
    s_nop 1
    v_cndmask_b32 v{vCsW}, v{t1}, v{vCsW}, vcc
    """))
    E.e(setup_read_base(passes[0]))
    for b in range(passes[0].nblk):
        for n in range(4): E.e(read_addr_xor(passes[0], n, b))
    E.e(stamp(0))

    def epilogue_ops(pi):
        ps = passes[pi]
        ab = ACC[pi & 1]
        o = []
        if ps.kind == 'F':
            for b in range(2): o += f_epi(ab + 16 * b, f_ks(ps.f, b, 2))
        elif ps.kind == 'Fh':
            o += f_epi(ab, f_ks(ps.f, 0, 1))
        elif ps.kind == 'Q':
            o += q_epi(ab)
        return o

    def at_barrier(t):
        u = t + 3
        if u < NST and u >= 4:
            pi, s = stages[u]
            if s == 0: E.addd(setup_dma(passes[pi]))
            E.addd(w_dma(passes[pi], s, u % 4, f"W{u}"))
        if 4 <= u <= 7: E.addd(x_dma(u))
        csched = {2: 0, 9: 1, 11: 2, 13: 3, 16: 4}
        if t in csched: E.addd(c_dma(csched[t]))
        if t + 1 < NST and stages[t + 1][1] == passes[stages[t + 1][0]].nstage - 1:
            pi1 = stages[t + 1][0]
            if pi1 + 1 < len(passes) and passes[pi1 + 1].kind != passes[pi1].kind:
                E.addf(setup_read_base(passes[pi1 + 1]))
        if t == 8:
            E.addf(stats_finish())
            E.addf(ext_ops(passes[0], ACC[0]))
            E.gate(63)
            if typ == 'A': E.addf(epilogue_ops(0))
            E.addf(nonce_load())
        if t == 9 and typ == 'B':
            E.addf(kv_epi_part1(ACC[0]))
        if t == 10:
            if typ == 'A': E.addf(nonce_check(typ))
            else:
                pass
        if typ == 'B' and t == 13:
            E.addf(kv_epi_part2())
            E.addf(nonce_check(typ))
        if typ == 'B' and t == 15:
            E.addf(flag_store(f"""s_lshl_b32 {sT2}, {sP}, 7
            s_lshl_b32 {sT3}, {sI}, 2
            s_add_u32 {sT2}, {sT2}, {sT3}
            s_add_u32 {sT2}, {sT2}, {WS_F2}""", f"f2{typ}"))
        if t == 16:
            E.addf(ext_ops(passes[1], ACC[1]))
            E.gate(127)
            E.addf(epilogue_ops(1))

    def barrier_seq(t):
        pre = []
        if t in (8, 16): E.flush_f()
        if stages[t][1] == passes[stages[t][0]].nstage - 1: E.flush_f()
        if typ == 'B' and t == 13: E.flush_f()
        if typ == 'B' and t == 15:
            E.flush_f()
            E.e([mk_wait_vm('PART')])
        E.flush_d()
        tags = [f"W{t}"]
        if t <= 7: tags.append(f"X{t}")
        E.e([mk_wait_vm(tags)])
        E.e(barrier())
        at_barrier(t)

    def reads(j):
        pi, s, t, n, b = items[j]
        ps = passes[pi]
        if pi == 0 and b == 0:
            E.e(mk(f"ds_read_b128 v[{XF+4*(4*s+n)}:{XF+4*(4*s+n)+3}], v{XRA+n} offset:{(s&3)*SLOT}"))
        E.e(w_read(ps, t % 4, n, b, j % NBUF))
        if s == ps.nstage - 1 and pi + 1 < len(passes):
            nx = passes[pi + 1]
            if not (nx.kind == ps.kind):
                if ps.kps == 4:
                    if b < nx.nblk: E.e(read_addr_xor(nx, n, b))
                else:
                    raise NotImplementedError

    def xslot(pi, s, n):
        ps = passes[pi]
        return ps.kps * s + n

    E.e([mk_wait_vm(["W0", "X0"])]); E.e(barrier()); at_barrier(0)
    E.e(stamp(1))
    for j in range(LA): reads(j)
    N = len(items)
    for i in range(N):
        j = i + LA
        if j < N:
            if items[j][2] != items[j - 1][2]: barrier_seq(items[j][2])
            reads(j)
        pi, s, t, n, b = items[i]
        ps = passes[pi]
        ab = ACC[pi & 1] + 16 * b
        wf = WF + 4 * (i % NBUF)
        xf = XF + 4 * xslot(pi, s, n)
        first = (s == 0 and n == 0)
        c = "0" if first else f"v[{ab}:{ab+15}]"
        if ps.orient == 'T':
            E.e(mk(f"v_mfma_f32_32x32x16_bf16 v[{ab}:{ab+15}], v[{wf}:{wf+3}], v[{xf}:{xf+3}], {c}"))
        else:
            E.e(mk(f"v_mfma_f32_32x32x16_bf16 v[{ab}:{ab+15}], v[{xf}:{xf+3}], v[{wf}:{wf+3}], {c}"))
        if (n & 3) == 0:
            cs = CSA + 4 * b
            cc = "0" if first else f"v[{cs}:{cs+3}]"
            E.e(mk(f"v_mfma_f32_16x16x32_bf16 v[{cs}:{cs+3}], v[{SEL}:{SEL+3}], v[{wf}:{wf+3}], {cc}"))
        if pi == 0 and b == 0 and n in (0, 2):
            E.addf(stats_ops(4 * s + n))
            if s == 7 and n == 2: E.addf(stats_publish())
        last_cs_n = 0 if ps.kps == 4 else 4
        if s == ps.nstage - 1 and n == last_cs_n and b == ps.nblk - 1:
            E.addf(cs_publish(ps))
        E.cur = i
        E.fill(CFG['fill'])
    E.flush()
    E.e(barrier())
    E.e(stamp(2))
    for c in (5, 6, 7, 8): E.e(c_dma(c))
    E.e(ext_ops(passes[2], ACC[0]))
    E.e(epilogue_ops(2))
    E.e([mk_wait_vm('H')])
    E.e(barrier())
    E.e(flag_store(f"""s_lshl_b32 {sT2}, {sI}, 7
    s_lshl_b32 {sT3}, {sJ}, 2
    s_add_u32 {sT2}, {sT2}, {sT3}
    s_add_u32 {sT2}, {sT2}, {WS_F1}""", f"f1{typ}"))
    E.e(c_dma(9))
    E.e(stamp(3))
    return E.out

P_ACC = 64
P_HF = 96
P_KZ = 16
P_DN = 240
P_PA = 8
RES0, RES1 = 6, 14
vP0, vP1, vP2 = 0, 3, 4
sH2 = sHo

def poll_flags(uid, setup, nflag_lanes, dwords):
    d = P_DN
    ld = f"buffer_load_dword v{d}, v{vP0}, {SRD_WS}, 0 offen sc1" if dwords == 1 else f"buffer_load_dwordx4 v[{d}:{d+3}], v{vP0}, {SRD_WS}, 0 offen sc1"
    o = mk(setup)
    o += mk(f"s_mov_b32 {sSpin}, 0")
    body = f"""L_poll_{uid}:
    {ld}
    s_waitcnt vmcnt(0)
    v_cmp_eq_u32 vcc, {sNonce}, v{d}
    """
    if dwords == 4:
        body += f"""v_cmp_eq_u32 {sSave}, {sNonce}, v{d+1}
        s_nop 1
        s_and_b64 vcc, vcc, {sSave}
        v_cmp_eq_u32 {sSave}, {sNonce}, v{d+2}
        s_nop 1
        s_and_b64 vcc, vcc, {sSave}
        v_cmp_eq_u32 {sSave}, {sNonce}, v{d+3}
        s_nop 1
        s_and_b64 vcc, vcc, {sSave}
        """
    body += f"""s_nop 1
    s_add_u32 {sSpin}, {sSpin}, 1
    s_cmp_gt_u32 {sSpin}, 0x80000
    s_cbranch_scc1 L_pollx_{uid}
    s_cmp_eq_u64 vcc, exec
    s_cbranch_scc0 L_poll_{uid}
    L_pollx_{uid}:"""
    return o, body

def reducer(uid):
    R = P_DN
    o = mk(f"""s_cmp_lg_u32 {sW}, 7
    s_cbranch_scc1 L_red_{uid}""")
    body = []
    body += mk(f"""v_and_b32 v{vP0}, 15, v{vLane}
    v_lshlrev_b32 v{vP0}, 2, v{vP0}
    s_lshr_b32 {sT2}, {sHH}, 2
    s_lshl_b32 {sT2}, {sT2}, 7
    s_add_u32 {sT2}, {sT2}, {WS_F2}
    v_add_u32 v{vP0}, {sT2}, v{vP0}
    s_mov_b32 {sSpin}, 0
    L_rpoll_{uid}:
    buffer_load_dword v{R}, v{vP0}, {SRD_WS}, 0 offen sc1
    s_waitcnt vmcnt(0)
    v_cmp_eq_u32 vcc, {sNonce}, v{R}
    s_add_u32 {sSpin}, {sSpin}, 1
    s_cmp_gt_u32 {sSpin}, 0x80000
    s_cbranch_scc1 L_rok_{uid}
    s_cmp_eq_u64 vcc, exec
    s_cbranch_scc0 L_rpoll_{uid}
    L_rok_{uid}:""")
    body += mk(f"""v_lshrrev_b32 v{vP0}, 3, v{vLane}
    v_mul_u32_u24 v{vP0}, 36864, v{vP0}
    v_and_b32 v{vP1}, 7, v{vLane}
    v_lshlrev_b32 v{vP1}, 4, v{vP1}
    v_add_u32 v{vP0}, v{vP0}, v{vP1}
    s_mul_i32 {sT2}, {sHH}, 1152
    s_lshl_b32 {sT3}, {sPP}, 7
    s_add_u32 {sT3}, {sT3}, {sT2}
    s_add_u32 {sT3}, {sT3}, {WS_PART}
    buffer_load_dwordx4 v[{R}:{R+3}], v{vP0}, {SRD_WS}, {sT3} offen sc1
    s_add_u32 {sT3}, {sT3}, {8*36864}
    buffer_load_dwordx4 v[{R+4}:{R+7}], v{vP0}, {SRD_WS}, {sT3} offen sc1
    v_and_b32 v{vP1}, 15, v{vLane}
    v_mul_u32_u24 v{vP1}, 36864, v{vP1}
    s_lshl_b32 {sT3}, {sPP}, 3
    s_add_u32 {sT3}, {sT3}, {sT2}
    s_add_u32 {sT3}, {sT3}, {WS_PART + 1024}
    buffer_load_dwordx2 v[{R+8}:{R+9}], v{vP1}, {SRD_WS}, {sT3} offen sc1""")
    for k in range(4): body += mk(f"v_add_f32 v{R+k}, v{R+k}, v{R+4+k}")
    for bit in (8, 16, 32):
        body += mk(f"""v_xor_b32 v{vP2}, {bit}, v{vLane}
        v_lshlrev_b32 v{vP2}, 2, v{vP2}""")
        for k in range(4): body += mk(f"ds_bpermute_b32 v{R+10+k}, v{vP2}, v{R+k}")
        for k in range(4): body += mk(f"v_add_f32 v{R+k}, v{R+k}, v{R+10+k}")
    for bit in (1, 2, 4, 8):
        body += mk(f"""v_xor_b32 v{vP2}, {bit}, v{vLane}
        v_lshlrev_b32 v{vP2}, 2, v{vP2}""")
        for k in range(2): body += mk(f"ds_bpermute_b32 v{R+10+k}, v{vP2}, v{R+8+k}")
        for k in range(2): body += mk(f"v_add_f32 v{R+8+k}, v{R+8+k}, v{R+10+k}")
    body += mk(f"""v_cvt_pk_bf16_f32 v{R}, v{R}, v{R+1}
    v_cvt_pk_bf16_f32 v{R+1}, v{R+2}, v{R+3}
    v_cvt_pk_bf16_f32 v{R+8}, v{R+8}, v{R+9}
    v_lshlrev_b32 v{vP0}, 3, v{vLane}
    v_mov_b32 v{vP1}, {OOB}
    v_cmp_gt_u32 vcc, 8, v{vLane}
    s_mul_i32 {sT2}, {sHH}, 640
    s_add_u32 {sT2}, {sT2}, {WS_ZB}
    v_cndmask_b32 v{vP0}, v{vP1}, v{vP0}, vcc
    s_lshl_b32 {sT3}, {sPP}, 6
    s_add_u32 {sT3}, {sT3}, {sT2}
    buffer_store_dwordx2 v[{R}:{R+1}], v{vP0}, {SRD_WS}, {sT3} offen sc1
    v_cmp_eq_u32 vcc, 0, v{vLane}
    v_mov_b32 v{vP0}, 0
    s_lshl_b32 {sT3}, {sPP}, 2
    s_add_u32 {sT3}, {sT3}, {sT2}
    s_add_u32 {sT3}, {sT3}, 512
    v_cndmask_b32 v{vP0}, v{vP1}, v{vP0}, vcc
    buffer_store_dword v{R+8}, v{vP0}, {SRD_WS}, {sT3} offen sc1
    s_waitcnt vmcnt(0)
    v_mov_b32 v{R}, {sNonce}
    s_lshl_b32 {sT3}, s2, 2
    s_add_u32 {sT3}, {sT3}, {WS_F3}
    buffer_store_dword v{R}, v{vP0}, {SRD_WS}, {sT3} offen sc1""")
    o += optional(body)
    o += mk(f"L_red_{uid}:")
    return o

def p2(uid):
    E = Emitter()
    t0, t1, t2 = vP0, vP1, vP2
    E.e(reducer(uid))
    E.e(mk(f"""v_lshrrev_b32 v{t0}, 2, v{vLane}
    v_and_b32 v{t0}, 3, v{t0}
    v_lshrrev_b32 v{t1}, 5, v{vLane}
    v_lshlrev_b32 v{t1}, 2, v{t1}
    v_add_u32 v{t1}, v{t1}, v{t0}
    v_lshlrev_b32 v{t1}, 7, v{t1}
    v_lshrrev_b32 v{t0}, 1, v{t0}
    v_lshlrev_b32 v{t0}, 6, v{t0}
    v_add_u32 v{t1}, v{t1}, v{t0}
    v_lshrrev_b32 v{t0}, 4, v{vLane}
    v_and_b32 v{t0}, 1, v{t0}
    v_lshlrev_b32 v{t0}, 5, v{t0}
    v_add_u32 v{t1}, v{t1}, v{t0}
    v_and_b32 v{t0}, 3, v{vLane}
    v_lshlrev_b32 v{t0}, 3, v{t0}
    v_add_u32 v{t1}, v{t1}, v{t0}
    s_lshl_b32 {sT0}, {sKQ}, 12
    v_add_u32 v{P_PA}, {sT0}, v{t1}
    v_xor_b32 v{P_PA+1}, 64, v{P_PA}
    v_add_u32 v{P_PA+2}, 0x10000, v{P_PA}
    v_add_u32 v{P_PA+3}, 0x10000, v{P_PA+1}
    v_add_u32 v{P_PA+4}, 0x20000, v{P_PA}
    v_add_u32 v{P_PA+5}, 0x20000, v{P_PA+1}"""))
    E.e(mk(f"""v_and_b32 v{t0}, 31, v{vLane}
    v_lshlrev_b32 v{t0}, 10, v{t0}
    v_lshrrev_b32 v{t1}, 5, v{vLane}
    v_lshlrev_b32 v{t1}, 3, v{t1}
    v_add_u32 v{t0}, v{t0}, v{t1}
    s_lshl_b32 {sT0}, {sRG}, 16
    s_lshl_b32 {sT1}, {sMH}, 15
    s_add_u32 {sT0}, {sT0}, {sT1}
    s_lshl_b32 {sT1}, {sCT}, 7
    s_add_u32 {sT0}, {sT0}, {sT1}
    s_lshl_b32 {sT1}, {sKQ}, 5
    s_add_u32 {sT1}, {sT0}, {sT1}
    buffer_load_dwordx2 v[{RES0}:{RES0+1}], v{t0}, {SRD_X}, {sT1} offen
    buffer_load_dwordx2 v[{RES1}:{RES1+1}], v{t0}, {SRD_X}, {sT1} offen offset:16""", tag='RES'))
    E.e(mk(f"s_mov_b32 {sWb}, {sT1}"))
    setup = f"""v_and_b32 v{t0}, 15, v{vLane}
    v_lshlrev_b32 v{t0}, 2, v{t0}
    s_lshr_b32 {sT2}, {sRG}, 1
    s_lshl_b32 {sT2}, {sT2}, 7
    s_add_u32 {sT2}, {sT2}, {WS_F1}
    v_add_u32 v{t0}, {sT2}, v{t0}"""
    o, body = poll_flags(f"f1{uid}", setup, 16, 1)
    E.e(o); E.e(mk(body, opt=False))
    E.e(stamp(4, 0, 4))
    E.e(mk(f"""s_lshl_b32 {sT0}, {sRG}, 1
    s_add_u32 {sT0}, {sT0}, {sMH}
    s_mul_i32 {sH2}, {sT0}, {144*1024}
    s_add_u32 {sH2}, {sH2}, {WS_H}
    s_mul_i32 {sT1}, {sKQ}, {28*1024}
    s_add_u32 {sT1}, {sT1}, {sH2}"""))
    for t in range(28):
        if t and t % 4 == 0: E.e(mk(f"s_add_u32 {sT1}, {sT1}, 4096"))
        E.e(mk(f"buffer_load_dwordx4 v[{P_HF+4*t}:{P_HF+4*t+3}], v{vL16}, {SRD_WS}, {sT1} offen offset:{(t%4)*1024} sc1", tag=f"HF{t}"))
    E.e(mk(f"""s_lshl_b32 {sT1}, {sKQ}, 13
    s_add_u32 {sT1}, {sT1}, {sH2}
    s_add_u32 {sT1}, {sT1}, {112*1024}"""))
    for t in range(28, 36):
        if t == 32: E.e(mk(f"s_add_u32 {sT1}, {sT1}, 4096"))
        E.e(mk(f"buffer_load_dwordx4 v[{P_HF+4*t}:{P_HF+4*t+3}], v{vL16}, {SRD_WS}, {sT1} offen offset:{(t%4)*1024} sc1", tag=f"HF{t}"))

    items = [(t, nb) for t in range(36) for nb in range(2)]
    LA = 2
    def rd(j):
        t, nb = items[j]
        c = t >> 1
        sl = C_SLOTS[c % 10]
        win = sl >> 2
        off = (sl & 3) * SLOT + (t & 1) * 2048
        a = P_PA + 2 * win + nb
        d = WF + 4 * (j % NBUF)
        E.e(mk(f"""ds_read_b64_tr_b16 v[{d}:{d+1}], v{a} offset:{off}
        ds_read_b64_tr_b16 v[{d+2}:{d+3}], v{a} offset:{off+1024}"""))
    def bar(c):
        E.flush_d()
        E.e([mk_wait_vm(f"C{c}")])
        E.e(barrier())
        if c >= 1 and c - 1 + 10 < 18: E.addd(c_dma(c - 1 + 10))
    def kz_loads():
        setup = f"""v_lshlrev_b32 v{t0}, 4, v{vLane}
        v_add_u32 v{t0}, {WS_F3}, v{t0}"""
        o, body = poll_flags(f"f3{uid}", setup, 64, 4)
        E.e(o); E.e(mk(body))
        E.e(mk(f"""v_and_b32 v{t0}, 31, v{vLane}
        v_lshlrev_b32 v{t1}, 5, v{t0}
        v_mov_b32 v{t2}, {OOB}
        v_cmp_gt_u32 vcc, 16, v{t0}
        v_and_b32 v{P_DN}, 27, v{t0}
        v_cndmask_b32 v{t1}, v{t2}, v{t1}, vcc
        v_cmp_eq_u32 vcc, 16, v{P_DN}
        v_mov_b32 v{t2}, 512
        v_lshrrev_b32 v{t0}, 5, v{vLane}
        v_cndmask_b32 v{t1}, v{t1}, v{t2}, vcc
        v_lshlrev_b32 v{t0}, 4, v{t0}
        v_add_u32 v{t1}, v{t1}, v{t0}
        s_mul_i32 {sT1}, {sKQ}, {8*640}
        s_add_u32 {sT1}, {sT1}, {WS_ZB}"""))
        for hh in range(8):
            E.e(mk(f"buffer_load_dwordx4 v[{P_KZ+4*hh}:{P_KZ+4*hh+3}], v{t1}, {SRD_WS}, {sT1} offen offset:{hh*640 if hh*640 < 4096 else 0} sc1" if hh * 640 < 4096 else
                   f"s_add_u32 {sT1}, {sT1}, {hh*640}\nbuffer_load_dwordx4 v[{P_KZ+4*hh}:{P_KZ+4*hh+3}], v{t1}, {SRD_WS}, {sT1} offen sc1"))
    def o_ops(t):
        hh = t - 28
        hf = P_HF + 4 * t
        D = P_DN
        o = mk(f"v_mfma_f32_32x32x16_bf16 v[{D}:{D+15}], v[{P_KZ+4*hh}:{P_KZ+4*hh+3}], v[{hf}:{hf+3}], 0")
        o += mk(f"v_add_f32 v{D+8}, {fhex(1e-6)}, v{D+8}")
        o += mk(f"v_rcp_f32 v{D+8}, v{D+8}")
        for r in range(8): o += mk(f"v_mul_f32 v{D+r}, v{D+r}, v{D+8}")
        for k in range(4): o += mk(f"v_cvt_pk_bf16_f32 v{hf+k}, v{D+2*k}, v{D+2*k+1}")
        return o

    bar(0)
    for j in range(LA): rd(j)
    for i in range(len(items)):
        j = i + LA
        if j < len(items):
            tj, nbj = items[j]
            if nbj == 0 and (tj & 1) == 0: bar(tj >> 1)
            rd(j)
        t, nb = items[i]
        if t == 20 and nb == 0: kz_loads()
        if t >= 28 and nb == 0: E.e(o_ops(t))
        ab = P_ACC + 16 * nb
        wf = WF + 4 * (i % NBUF)
        hf = P_HF + 4 * t
        c = "0" if t == 0 else f"v[{ab}:{ab+15}]"
        E.e(mk(f"v_mfma_f32_32x32x16_bf16 v[{ab}:{ab+15}], v[{wf}:{wf+3}], v[{hf}:{hf+3}], {c}"))
        E.cur = i
        E.fill(0)
    E.flush()
    E.e(stamp(5, 0, 4))
    E.e(barrier())
    E.e(mk(f"""s_lshl_b32 {sT0}, {sMH}, 15
    s_lshl_b32 {sT1}, {sKQ}, 11
    s_add_u32 {sT0}, {sT0}, {sT1}
    v_add_u32 v{t0}, {sT0}, v{vL16}"""))
    for d in range(4):
        base = P_ACC + 16 * (d >> 1) + 8 * (d & 1)
        E.e(mk(f"""ds_write_b128 v{t0}, v[{base}:{base+3}] offset:{d*8192}
        ds_write_b128 v{t0}, v[{base+4}:{base+7}] offset:{d*8192+1024}"""))
    E.e(barrier())
    E.e(mk(f"""s_lshl_b32 {sT0}, {sMH}, 15
    s_lshl_b32 {sT1}, {sKQ}, 13
    s_add_u32 {sT0}, {sT0}, {sT1}
    v_add_u32 v{t0}, {sT0}, v{vL16}"""))
    R = P_HF
    for src in range(4):
        E.e(mk(f"""ds_read_b128 v[{R+8*src}:{R+8*src+3}], v{t0} offset:{src*2048}
        ds_read_b128 v[{R+8*src+4}:{R+8*src+7}], v{t0} offset:{src*2048+1024}"""))
    for k in range(8):
        E.e(mk(f"""v_add_f32 v{R+k}, v{R+k}, v{R+8+k}
        v_add_f32 v{R+16+k}, v{R+16+k}, v{R+24+k}"""))
    for k in range(8): E.e(mk(f"v_add_f32 v{R+k}, v{R+k}, v{R+16+k}"))
    X = R + 8
    for g, res in enumerate((RES0, RES1)):
        E.e(mk(f"""v_lshlrev_b32 v{X}, 16, v{res}
        v_and_b32 v{X+1}, 0xffff0000, v{res}
        v_lshlrev_b32 v{X+2}, 16, v{res+1}
        v_and_b32 v{X+3}, 0xffff0000, v{res+1}
        v_add_f32 v{R+4*g}, v{R+4*g}, v{X}
        v_add_f32 v{R+4*g+1}, v{R+4*g+1}, v{X+1}
        v_add_f32 v{R+4*g+2}, v{R+4*g+2}, v{X+2}
        v_add_f32 v{R+4*g+3}, v{R+4*g+3}, v{X+3}"""))
    O = R + 16
    E.e(mk(f"""v_cvt_pk_bf16_f32 v{O}, v{R}, v{R+1}
    v_cvt_pk_bf16_f32 v{O+1}, v{R+2}, v{R+3}
    v_cvt_pk_bf16_f32 v{O+2}, v{R+4}, v{R+5}
    v_cvt_pk_bf16_f32 v{O+3}, v{R+6}, v{R+7}
    v_and_b32 v{t0}, 31, v{vLane}
    v_lshlrev_b32 v{t0}, 10, v{t0}
    v_lshrrev_b32 v{t1}, 5, v{vLane}
    v_lshlrev_b32 v{t1}, 4, v{t1}
    v_add_u32 v{t0}, v{t0}, v{t1}
    v_permlane32_swap_b32 v{O}, v{O+2}
    v_permlane32_swap_b32 v{O+1}, v{O+3}
    buffer_store_dwordx4 v[{O}:{O+3}], v{t0}, {SRD_OUT}, {sWb} offen"""))
    E.e(stamp(6, 0, 4))
    return E.out

def build():
    hdr = f"""; fused LN + linear attention + SwiGLU block, single persistent launch (generated by my gen.py)
; @launch grid=(256,1,1) block=(512,1,1) lds=163840
.amdgcn_target "amdgcn-amd-amdhsa--gfx950"
.text
.globl {NAME}_kernel
.p2align 8
.type {NAME}_kernel,@function
{NAME}_kernel:
"""
    pro = mk("s_cmp_ge_u32 s2, 256\ns_cbranch_scc1 L_end") + prologue()
    pro += mk(f"s_bitcmp1_b32 {sJ}, 0\ns_cbranch_scc1 L_typeB")
    txt = hdr
    paths = []
    for typ in ('A', 'B'):
        body = p1(typ)
        if CFG['stop'] != 'p1': body += p2(typ)
        body += mk("s_waitcnt vmcnt(0) lgkmcnt(0)\ns_endpgm")
        full = insert_nops(insert_waits(pro + body))
        paths.append(full)
    def after_branch(lst):
        for k, i in enumerate(lst):
            if i.text.startswith('s_cbranch_scc1 L_typeB'): return lst[k + 1:]
    txt += render(paths[0])
    txt += "L_typeB:\n" + render(after_branch(paths[1]))
    txt += "L_end:\n    s_endpgm\n"
    txt += f""".section .rodata,"a"
.p2align 6
.amdhsa_kernel {NAME}_kernel
  .amdhsa_next_free_vgpr 256
  .amdhsa_next_free_sgpr 102
  .amdhsa_accum_offset 256
  .amdhsa_group_segment_fixed_size 0
  .amdhsa_kernarg_size 80
  .amdhsa_user_sgpr_count 2
  .amdhsa_user_sgpr_kernarg_segment_ptr 1
  .amdhsa_system_sgpr_workgroup_id_x 1
.end_amdhsa_kernel
"""
    return txt

if __name__ == "__main__":
    import argparse
    ap = argparse.ArgumentParser()
    ap.add_argument('-o', default='k.s')
    ap.add_argument('--stop', default=None)
    ap.add_argument('--stamps', action='store_true')
    a = ap.parse_args()
    CFG['stop'] = a.stop; CFG['stamps'] = a.stamps
    t = build()
    open(a.o, 'w').write(t)
    print(len(t), 'bytes', t.count('\n'), 'lines')
```
